```python
import torch

def _softmax(x, axis=-1):
    return torch.softmax(x, dim=axis)
def _gelu(x):
    return torch.nn.functional.gelu(x, approximate="tanh")
def _silu(x):
    return torch.nn.functional.silu(x)
def _sigmoid(x):
    return torch.sigmoid(x)
def _layernorm(x, axis=-1, eps=1e-5):
    m = x.mean(dim=axis, keepdim=True)
    v = x.var(dim=axis, keepdim=True, unbiased=False)
    return (x - m) / torch.sqrt(v + eps)
def _scatter_add(tgt, idx, src, axis=0):
    return tgt.clone().index_add_(axis, idx, src)
def _segment_sum(src, seg, n):
    out = torch.zeros((n,) + src.shape[1:], dtype=src.dtype)
    return out.index_add_(0, seg, src)
def _pad(x, pw):
    flat = tuple(v for pair in reversed(pw) for v in pair)
    return torch.nn.functional.pad(x, flat)

kernel_name = 'sequential_preLN__sliding_local_dilated__swiglu_ffn__prompt'

def setup_inputs():

    _w = (lambda a: (lambda t: t.to(torch.bfloat16) if t.is_floating_point() else t)(torch.as_tensor(a)))
    def _A_setup():
        B, S, D = 1, 2048, 512
        return {
            "x": _w((lambda *s: torch.randn(*s, dtype=torch.bfloat16) * 0.05)(B, S, D)),
            "wqkv": _w((lambda *s: torch.randn(*s, dtype=torch.bfloat16) * 0.05)(D, 3 * D)),
            "wo": _w((lambda *s: torch.randn(*s, dtype=torch.bfloat16) * 0.05)(D, D)),
        }
    _A_in = _A_setup()

    def _B_setup():
        B, S, D, F = 1, 2048, 512, 1792
        return {
            "x": _w((lambda *s: torch.randn(*s, dtype=torch.bfloat16) * 0.05)(B, S, D)),
            "w_gate": _w((lambda *s: torch.randn(*s, dtype=torch.bfloat16) * 0.05)(D, F)),
            "w_up": _w((lambda *s: torch.randn(*s, dtype=torch.bfloat16) * 0.05)(D, F)),
            "w_down": _w((lambda *s: torch.randn(*s, dtype=torch.bfloat16) * 0.05)(F, D)),
        }
    _B_in = _B_setup()

    return {
        "A_x": _A_in["x"],
        "A_wqkv": _A_in["wqkv"],
        "A_wo": _A_in["wo"],
        "B_x": _B_in["x"],
        "B_w_gate": _B_in["w_gate"],
        "B_w_up": _B_in["w_up"],
        "B_w_down": _B_in["w_down"],
    }

def reference(A_x, A_wqkv, A_wo, B_x, B_w_gate, B_w_up, B_w_down):
    def _A_ref(x, wqkv, wo):
        B, S, D = x.shape
        H = 32; Dh = D // H
        W, dil = 8, 2
        qkv = (lambda x, *d: x.permute(*d))((x @ wqkv).reshape(B, S, 3, H, Dh), 2, 0, 3, 1, 4)
        q, k, v = qkv[0], qkv[1], qkv[2]
        scale = Dh ** -0.5
        pos = torch.arange(S)
        off = torch.arange(W) * dil
        idx = pos[:, None] - off[None, :]
        mask = idx >= 0
        idx_c = torch.where(mask, idx, 0).reshape(-1)
        kg = k[:, :, idx_c, :].reshape(B, H, S, W, Dh)
        vg = v[:, :, idx_c, :].reshape(B, H, S, W, Dh)
        logits = torch.einsum("bhsd,bhswd->bhsw", q, kg) * scale
        logits = torch.where(mask[None, None, :, :], logits, -1e9)
        attn = _softmax(logits, axis=-1)
        o = torch.einsum("bhsw,bhswd->bhsd", attn, vg)
        return (lambda x, *d: x.permute(*d))(o, 0, 2, 1, 3).reshape(B, S, D) @ wo

    def _B_ref(x, w_gate, w_up, w_down):
        g = _silu(x @ w_gate)
        u = x @ w_up
        return (g * u) @ w_down

    x = A_x
    h = x + _A_ref(_layernorm(x, axis=-1), A_wqkv, A_wo)
    h2 = h + _B_ref(_layernorm(h, axis=-1), B_w_gate, B_w_up, B_w_down)
    return h2
```

```python
import re

REG = re.compile(r'^(v|a|s)(\d+)$|^(v|a|s)\[(\d+):(\d+)\]$')
TRANS = ('v_exp_f32', 'v_log_f32', 'v_rcp_f32', 'v_rsq_f32', 'v_sqrt_f32', 'v_sin_f32', 'v_cos_f32')

def regs_of(tok):
    tok = tok.strip()
    neg = tok.startswith('-')
    if neg: tok = tok[1:]
    if tok.startswith('abs(') or tok.startswith('|'):
        tok = tok.strip('|').replace('abs(', '').rstrip(')')
    m = REG.match(tok)
    if m:
        if m.group(1): return [(m.group(1), int(m.group(2)))]
        return [(m.group(3), i) for i in range(int(m.group(4)), int(m.group(5)) + 1)]
    if tok == 'vcc': return [('s', 106), ('s', 107)]
    if tok == 'exec': return [('s', 126), ('s', 127)]
    if tok == 'm0': return [('s', 124)]
    if tok == 'vcc_lo': return [('s', 106)]
    if tok == 'vcc_hi': return [('s', 107)]
    if tok == 'exec_lo': return [('s', 126)]
    if tok == 'exec_hi': return [('s', 127)]
    return []

class Ins:
    __slots__ = ('text', 'op', 'dst', 'src', 'kind', 'cond', 'passes', 'srcC', 'token', 'ws', 'srcAB')
    def __init__(self, text):
        self.text = text; self.cond = None; self.token = None
        t = text.split(';')[0].strip()
        if t.endswith(':') or t.startswith('.') or not t:
            self.op = 'label'; self.dst = []; self.src = []; self.kind = 'label'; self.ws = 0; return
        parts = t.split(None, 1)
        op = parts[0]; self.op = op
        rest = parts[1] if len(parts) > 1 else ''
        ops = [o.strip() for o in rest.split(',')] if rest else []
        mods = ''
        if ops:
            l = ops[-1].split(None, 1)
            ops[-1] = l[0]
            mods = l[1] if len(l) > 1 else ''
        R = [regs_of(o) for o in ops]
        self.passes = 0; self.srcC = []; self.srcAB = []; self.ws = 1
        flat = lambda L: [x for l in L for x in l]
        if op.startswith('v_mfma'):
            self.kind = 'mfma'; self.dst = R[0]; self.src = flat(R[1:]); self.srcC = R[3]; self.srcAB = R[1] + R[2]
            self.passes = 8 if '32x32' in op else 4
        elif op.startswith('buffer_load') or op.startswith('global_load'):
            if ' lds' in (' ' + mods) or 'load_lds' in op:
                self.kind = 'dma'; self.dst = []; self.src = flat(R) + [('s', 124)]
            else:
                self.kind = 'vload'; self.dst = R[0]; self.src = flat(R[1:])
        elif op.startswith('buffer_store') or op.startswith('global_store') or op.startswith('buffer_atomic') or op.startswith('global_atomic'):
            self.kind = 'vstore'; self.dst = []; self.src = flat(R)
        elif op.startswith('ds_read') or op.startswith('ds_bpermute') or op.startswith('ds_swizzle'):
            self.kind = 'dsread'; self.dst = R[0]; self.src = flat(R[1:])
        elif op.startswith('ds_'):
            self.kind = 'dswrite'; self.dst = []; self.src = flat(R)
        elif op.startswith('s_load') or op.startswith('s_memtime') or op.startswith('s_memrealtime'):
            self.kind = 'smem'; self.dst = R[0]; self.src = flat(R[1:])
        elif op.startswith('v_'):
            self.kind = 'valu'
            self.dst = list(R[0]); self.src = flat(R[1:])
            if op.startswith('v_permlane'):
                self.dst = R[0] + R[1]; self.src = R[0] + R[1]
            if op.startswith('v_fmac') or op.startswith('v_dot2c'):
                self.src += R[0]
            if op.startswith('v_cndmask') and len(ops) == 3: self.src += regs_of('vcc')
            if op.startswith('v_add_co') or op.startswith('v_addc_co') or op.startswith('v_sub_co'):
                self.dst = R[0] + R[1]; self.src = flat(R[2:])
            if op.startswith('v_mad_u64'):
                self.dst = R[0] + R[1]; self.src = flat(R[2:])
        elif op == 's_nop':
            self.kind = 'nop'; self.dst = []; self.src = []; self.ws = int(ops[0], 0) + 1
        elif op in ('s_waitcnt', 's_barrier', 's_endpgm', 's_sleep', 's_setprio', 's_branch') or op.startswith('s_cbranch'):
            self.kind = 'ctl'; self.dst = []; self.src = []
            if op == 's_cbranch_vccz' or op == 's_cbranch_vccnz': self.src = regs_of('vcc')
        elif op.startswith('s_cmp') or op.startswith('s_bitcmp'):
            self.kind = 'salu'; self.dst = []; self.src = flat(R)
        elif op.startswith('s_'):
            self.kind = 'salu'; self.dst = R[0]; self.src = flat(R[1:])
            if op.startswith('s_addk') or op.startswith('s_mulk'): self.src += R[0]
            if 'saveexec' in op: self.dst = R[0] + regs_of('exec')
        else:
            raise ValueError('unknown op ' + text)

class Asm:
    def __init__(self):
        self.out = []
        self.vmq = []
        self.lgq = []
        self.cond = None
        self.ncond = 0
        self.nops_inserted = 0
    def raw(self, text):
        i = Ins(text); i.cond = self.cond; self.out.append(i); return i
    def label(self, name): self.raw(name + ':')
    def comment(self, c): self.raw('; ' + c)
    def _wait(self, vm=None, lg=None):
        parts = []
        if vm is not None:
            vm = min(vm, 63); parts.append(f'vmcnt({vm})')
            self.vmq = self.vmq[len(self.vmq) - vm:] if vm < len(self.vmq) else self.vmq
            if vm == 0: self.vmq = []
        if lg is not None:
            lg = min(lg, 15); parts.append(f'lgkmcnt({lg})')
            self.lgq = self.lgq[len(self.lgq) - lg:] if lg < len(self.lgq) else self.lgq
            if lg == 0: self.lgq = []
        self.raw('s_waitcnt ' + ' '.join(parts))
    def _count_after(self, q, idx):
        n = 0
        for j in q[idx + 1:]:
            if j.cond is None or j.cond == self.cond: n += 1
        return n
    def _need(self, touched):
        vm = lg = None
        ts = set(touched)
        for idx in range(len(self.vmq) - 1, -1, -1):
            if ts & set(self.vmq[idx].dst):
                vm = self._count_after(self.vmq, idx); vi = idx; break
        for idx in range(len(self.lgq) - 1, -1, -1):
            if ts & set(self.lgq[idx].dst):
                if any(x.kind == 'smem' for x in self.lgq): lg = 0
                else: lg = self._count_after(self.lgq, idx)
                li = idx; break
        if vm is not None or lg is not None:
            parts = []
            if vm is not None:
                parts.append(f'vmcnt({min(vm,63)})'); self.vmq = self.vmq[vi + 1:]
            if lg is not None:
                parts.append(f'lgkmcnt({min(lg,15)})'); self.lgq = [] if lg == 0 else self.lgq[li + 1:]
            self.raw('s_waitcnt ' + ' '.join(parts))
    def wait_token(self, token):
        last = None
        for idx, x in enumerate(self.vmq):
            if x.token == token: last = idx
        if last is None: return
        vm = self._count_after(self.vmq, last)
        self.vmq = self.vmq[last + 1:]
        self.raw(f's_waitcnt vmcnt({min(vm,63)})')
    def wait_vm0(self): self._wait(vm=0)
    def wait_lg0(self): self._wait(lg=0)
    def wait_all(self): self._wait(vm=0, lg=0)
    def _hazard(self, c):
        need = 0
        dist = 0
        cs = set(c.src); cd = set(c.dst)
        for p in reversed(self.out):
            if dist >= 22: break
            if p.kind == 'label':
                continue
            pd = set(p.dst)
            req = 0
            if p.kind == 'valu':
                vd = {r for r in pd if r[0] in 'va'}
                sd = {r for r in pd if r[0] == 's'}
                if c.kind == 'mfma' and vd & cs: req = max(req, 2)
                if c.kind == 'valu':
                    if c.op.startswith('v_permlane') and vd & cs: req = max(req, 2)
                    if ('dpp' in c.text) and vd & cs: req = max(req, 2)
                    if c.op.startswith('v_readfirstlane') or c.op.startswith('v_readlane'):
                        if vd & cs: req = max(req, 1)
                        if sd & cs: req = max(req, 4)
                    if p.op.split('_e')[0] in TRANS and vd & cs: req = max(req, 1)
                    if sd & cs: req = max(req, 2)
                if c.kind in ('vload', 'vstore', 'dma') and sd & cs: req = max(req, 5)
                if c.kind in ('salu', 'ctl') and sd & cs: req = max(req, 1)
                if c.kind == 'mfma' and (('s', 126) in sd): req = max(req, 4)
            elif p.kind == 'mfma':
                big = {4: 8, 8: 12}[p.passes]
                if c.kind == 'mfma':
                    if pd & set(c.srcAB): req = max(req, big)
                    if pd & set(c.srcC):
                        if not (c.srcC == p.dst and c.passes == p.passes and c.op == p.op): req = max(req, p.passes + 2)
                    elif pd & cd: req = max(req, p.passes + 2)
                elif c.kind in ('valu', 'vload', 'vstore', 'dsread', 'dswrite', 'dma'):
                    if pd & (cs | cd): req = max(req, big)
                    if c.kind == 'valu' and set(p.srcC) & cd: req = max(req, p.passes - 1)
            elif p.kind == 'salu':
                if ('s', 124) in pd and c.kind == 'dma': req = max(req, 1)
            elif p.kind == 'vstore':
                if ('x4' in p.op or 'x3' in p.op) and c.kind in ('valu', 'vload', 'dsread', 'mfma'):
                    data = set(regs_of(p.text.split(None, 1)[1].split(',')[0 if p.op.startswith('buffer') else 1]))
                    if data & cd: req = max(req, 2)
            need = max(need, req - dist)
            if p.cond is None or p.cond == c.cond:
                dist += p.ws
        while need > 0:
            n = min(need, 16)
            i = Ins(f's_nop {n-1}'); i.cond = self.cond; self.out.append(i); self.nops_inserted += n
            need -= n
    def e(self, text, token=None):
        i = Ins(text); i.cond = self.cond; i.token = token
        self._need(i.src + i.dst)
        self._hazard(i)
        self.out.append(i)
        if i.kind in ('vload', 'vstore', 'dma'): self.vmq.append(i)
        elif i.kind in ('dsread', 'dswrite', 'smem'): self.lgq.append(i)
        return i
    def barrier(self, lg=True):
        if lg and self.lgq: self.wait_lg0()
        self.raw('s_barrier')
    def begin_cond(self):
        self.ncond += 1; self.cond = self.ncond
    def end_cond(self):
        self.cond = None
    def text(self):
        return '\n'.join(('' if x.kind == 'label' else '  ') + x.text for x in self.out) + '\n'
```

```python
import sys, os, struct
from asmlib import Asm
KN = "sequential_preLN__sliding_local_dilated__swiglu_ffn__prompt_kernel"
OPT = dict(stop=0, ts=0, up_chunks=2)
for a in sys.argv[2:]:
    k, v = a.split('='); OPT[k] = int(v)

def f32(x): return struct.unpack('<I', struct.pack('<f', x))[0]
LOG2E = 1.4426950408889634

WS_FLAGS = 0
WS_CS = 0x2000
WS_STATS = 0x40000
WS_O = 0x100000
WS_H = 0x300000
WS_ACT = 0x500000
WS_TS = 0xD00000
WS_SIZE = 0x1000000
L_WO = 98304
L_CS1 = 162816
L_KV = 65536
KVT = 2176; KVP = 136
SLOT = 28928; KS3 = 14464; UPOFF = 7296
L_H4 = 86784
L_CS3 = 160512
def p4addr(s):
    if s < 18: return L_H4 + s * 4096
    if s < 39: return (s - 18) * 4096
    return L_H4 + (s - 39) * 4096

SRD_X, SRD_WQ, SRD_WO, SRD_GU, SRD_WD, SRD_OUT, SRD_WS, SRD_DBG = 24, 28, 32, 36, 40, 44, 48, 52
sG, sJ, sW, sNONCE, sCB, sRH, sT2 = 56, 57, 58, 59, 60, 61, 62
sTMP, sTMP2, sTMP3, sSPIN = 63, 64, 65, 66
sWB, sMB = 67, 68
sHI = 69
sGUB, sGUM = 70, 71
sWDB, sWDM = 72, 73
sM1, sM2, sM3, sMD = 74, 76, 78, 80
sI0, sNI0 = 82, 84
sO4 = 86
sC0, sC1 = 90, 91
sTS = 4
def srd(b): return f's[{b}:{b+3}]'
def sp(b): return f's[{b}:{b+1}]'
def v(b, n=1): return f'v{b}' if n == 1 else f'v[{b}:{b+n-1}]'
def a(b, n=1): return f'a{b}' if n == 1 else f'a[{b}:{b+n-1}]'

A = Asm()
e = A.e
nts = [0]
TSR = [92, 94, 96, 98, 100] + list(range(4, 24, 2))
def stamp():
    if OPT['ts']:
        k = nts[0]; nts[0] += 1
        assert k < 15
        e(f's_memtime {sp(TSR[k])}')

def weave(main, fill, start=0, every=1, per=1):
    fill = list(fill); fi = 0
    for k, m in enumerate(main):
        run(m)
        if k >= start and (k - start) % every == 0:
            for _ in range(per):
                if fi < len(fill): run(fill[fi]); fi += 1
    while fi < len(fill): run(fill[fi]); fi += 1
def run(x):
    if callable(x): x()
    elif isinstance(x, (list, tuple)):
        for y in x: run(y)
    else: e(x)

vTID, vLANE, vI, vG4 = 0, 1, 2, 3
vT0, vT1, vT2, vT3 = 4, 5, 6, 7
vDW = 8
vL16 = 9
vXO, vHO, vWQD = 10, 11, 12
vTR0, vTR1, vTR0B, vTR1B, vTRE = 13, 14, 15, 16, 17
vCSW = 18; vCSR = 19
vFLG = 20
vKVW = 21
vOUT = 22
vCSJ = 23
vGUD = 24
vT4 = 31
vXR = 32
vONE = 40
vCJ = 224
vH = 240

def prologue():
    e(f's_cmp_ge_u32 s2, 256')
    e('s_cbranch_scc1 L_end')
    e('s_load_dwordx16 s[4:19], s[0:1], 0')
    e('s_load_dwordx4 s[20:23], s[0:1], 64')
    e(f'v_and_b32 {v(vLANE)}, 63, v0')
    e(f'v_lshrrev_b32 {v(vT0)}, 6, v0')
    e(f'v_and_b32 {v(vI)}, 15, v0')
    e(f'v_readfirstlane_b32 s{sW}, {v(vT0)}')
    e(f'v_lshrrev_b32 {v(vG4)}, 4, {v(vLANE)}')
    e(f'v_mov_b32 {v(vONE)}, 0x3f803f80')
    for k in range(1, 4): e(f'v_mov_b32 {v(vONE+k)}, {v(vONE)}')
    e(f's_and_b32 s{sTMP}, s2, 7')
    e(f's_lshr_b32 s{sTMP2}, s2, 3')
    e(f's_and_b32 s{sJ}, s{sTMP2}, 15')
    e(f's_lshr_b32 s{sTMP2}, s{sTMP2}, 4')
    e(f's_lshl_b32 s{sG}, s{sTMP}, 1')
    e(f's_add_u32 s{sG}, s{sG}, s{sTMP2}')
    e(f's_and_b32 s{sCB}, s{sJ}, 7')
    e(f's_lshr_b32 s{sRH}, s{sJ}, 3')
    e(f's_mov_b32 s{sHI}, 0xffff0000')
    e(f's_mov_b32 s{sI0}, 0x00010001'); e(f's_mov_b32 s{sI0+1}, 0x00010001')
    e(f's_mov_b32 s{sNI0}, 0xfffefffe'); e(f's_mov_b32 s{sNI0+1}, 0xfffefffe')
    for k in range(64): e(f'v_accvgpr_write_b32 {a(128+k)}, {v(vONE)}')
    e(f's_lshl_b32 s{sTMP}, s{sG}, 7')
    e(f's_lshl_b32 s{sTMP2}, s{sW}, 5')
    e(f's_add_u32 s{sTMP2}, s{sTMP2}, s{sTMP}')
    e(f'v_lshl_add_u32 {v(vT0)}, {v(vI)}, 1, s{sTMP2}')
    e(f'v_lshlrev_b32 {v(vT0)}, 10, {v(vT0)}')
    e(f'v_lshl_add_u32 {v(vXO)}, {v(vG4)}, 4, {v(vT0)}')
    e(f's_sub_u32 s{sTMP}, s{sTMP}, 16')
    e(f'v_and_b32 {v(vT0)}, 7, {v(vI)}')
    e(f'v_lshl_add_u32 {v(vT0)}, {v(vT0)}, 1, s{sTMP}')
    e(f'v_lshrrev_b32 {v(vT1)}, 3, {v(vI)}')
    e(f'v_add_u32 {v(vT0)}, {v(vT0)}, {v(vT1)}')
    e(f'v_max_i32 {v(vT0)}, 0, {v(vT0)}')
    e(f'v_lshlrev_b32 {v(vT0)}, 10, {v(vT0)}')
    e(f'v_lshl_add_u32 {v(vHO)}, {v(vG4)}, 4, {v(vT0)}')
    e(f'v_lshrrev_b32 {v(vT0)}, 2, {v(vLANE)}')
    e(f'v_mul_u32_u24 {v(vT0)}, 3072, {v(vT0)}')
    e(f'v_lshrrev_b32 {v(vT1)}, 5, {v(vLANE)}')
    e(f'v_lshlrev_b32 {v(vT1)}, 1, {v(vT1)}')
    e(f'v_and_b32 {v(vT2)}, 3, {v(vLANE)}')
    e(f'v_xor_b32 {v(vT1)}, {v(vT1)}, {v(vT2)}')
    e(f'v_lshl_add_u32 {v(vWQD)}, {v(vT1)}, 4, {v(vT0)}')
    e(f's_mul_i32 s{sWB}, s{sW}, {2*49152}')
    e(f's_lshl_b32 s{sTMP}, s{sJ}, 6')
    e(f's_add_u32 s{sWB}, s{sWB}, s{sTMP}')
    e(f's_lshl_b32 s{sMB}, s{sW}, 11')
    A.wait_lg0()
    def mk(b, p, size):
        e(f's_mov_b32 s{b}, s{p}'); e(f's_and_b32 s{b+1}, s{p+1}, 0xffff')
        e(f's_mov_b32 s{b+2}, {size}'); e(f's_mov_b32 s{b+3}, 0x20000')
    mk(SRD_X, 4, 2097152); mk(SRD_WQ, 6, 1572864)

def prologue2():
    def mk(b, p, size):
        e(f's_mov_b32 s{b}, s{p}'); e(f's_and_b32 s{b+1}, s{p+1}, 0xffff')
        e(f's_mov_b32 s{b+2}, {size}'); e(f's_mov_b32 s{b+3}, 0x20000')
    mk(SRD_WO, 8, 524288); mk(SRD_WD, 16, 1835008); mk(SRD_OUT, 18, 2097152)
    mk(SRD_WS, 22, WS_SIZE); mk(SRD_DBG, 20, 256)
    e(f's_bitcmp1_b32 s{sW}, 0')
    e(f's_cselect_b32 s{SRD_GU}, s14, s12')
    e(f's_cselect_b32 s{SRD_GU+1}, s15, s13')
    e(f's_and_b32 s{SRD_GU+1}, s{SRD_GU+1}, 0xffff')
    e(f's_mov_b32 s{SRD_GU+2}, 1835008'); e(f's_mov_b32 s{SRD_GU+3}, 0x20000')
    e(f'v_lshlrev_b32 {v(vL16)}, 4, {v(vLANE)}')
    e(f's_lshl_b32 s{sT2}, s{sG}, 3')
    e(f's_lshl_b32 s{sTMP}, s{sRH}, 2')
    e(f's_add_u32 s{sT2}, s{sT2}, s{sTMP}')
    e(f's_add_u32 s{sT2}, s{sT2}, s{sW}')
    e(f's_lshr_b32 s{sTMP}, s{sT2}, 1')
    e(f's_lshl_b32 s{sTMP}, s{sTMP}, 5')
    e(f's_and_b32 s{sTMP2}, s{sT2}, 1')
    e(f's_add_u32 s{sTMP}, s{sTMP}, s{sTMP2}')
    e(f'v_lshl_add_u32 {v(vT0)}, {v(vI)}, 1, s{sTMP}')
    e(f'v_lshlrev_b32 {v(vT0)}, 10, {v(vT0)}')
    e(f'v_lshl_add_u32 {v(vT0)}, {v(vG4)}, 3, {v(vT0)}')
    e(f's_lshl_b32 s{sTMP}, s{sCB}, 7')
    e(f'v_add_u32 {v(vOUT)}, s{sTMP}, {v(vT0)}')
    e(f'v_lshrrev_b32 {v(vT0)}, 3, {v(vLANE)}')
    e(f'v_lshlrev_b32 {v(vT0)}, 10, {v(vT0)}')
    e(f'v_lshlrev_b32 {v(vT1)}, 1, {v(vG4)}')
    e(f'v_and_b32 {v(vT2)}, 7, {v(vLANE)}')
    e(f'v_xor_b32 {v(vT1)}, {v(vT1)}, {v(vT2)}')
    e(f'v_lshl_add_u32 {v(vDW)}, {v(vT1)}, 4, {v(vT0)}')
    e(f's_lshl_b32 s{sWDB}, s{sW}, 13')
    e(f's_add_u32 s{sWDB}, s{sWDB}, s{sTMP}')
    e(f's_lshl_b32 s{sWDM}, s{sW}, 10')
    e(f'v_lshrrev_b32 {v(vT0)}, 2, {v(vI)}')
    e(f'v_lshl_add_u32 {v(vT0)}, {v(vG4)}, 3, {v(vT0)}')
    e(f'v_lshlrev_b32 {v(vT0)}, 6, {v(vT0)}')
    e(f'v_and_b32 {v(vT1)}, 1, {v(vG4)}')
    e(f'v_lshl_add_u32 {v(vT0)}, {v(vT1)}, 5, {v(vT0)}')
    e(f'v_and_b32 {v(vT1)}, 3, {v(vI)}')
    e(f'v_lshl_add_u32 {v(vTR0)}, {v(vT1)}, 3, {v(vT0)}')
    e(f'v_xor_b32 {v(vTR1)}, 32, {v(vTR0)}')
    e(f'v_add_u32 {v(vTR0B)}, 0x10000, {v(vTR0)}')
    e(f'v_add_u32 {v(vTR1B)}, 0x10000, {v(vTR1)}')
    e(f's_and_b32 s{sTMP}, s{sW}, 1'); e(f's_lshl_b32 s{sTMP}, s{sTMP}, 5')
    e(f's_lshr_b32 s{sTMP2}, s{sW}, 1'); e(f's_add_u32 s{sTMP2}, s{sTMP2}, 1'); e(f's_lshl_b32 s{sTMP2}, s{sTMP2}, 15')
    e(f'v_xor_b32 {v(vTRE)}, s{sTMP}, {v(vTR0)}')
    e(f'v_add_u32 {v(vTRE)}, s{sTMP2}, {v(vTRE)}')
    e(f'v_and_b32 {v(vT0)}, 3, {v(vI)}')
    e(f'v_cmp_eq_u32 {sp(sM1)}, 1, {v(vT0)}')
    e(f'v_cmp_eq_u32 {sp(sM2)}, 2, {v(vT0)}')
    e(f'v_cmp_eq_u32 {sp(sM3)}, 3, {v(vT0)}')
    e(f'v_lshrrev_b32 {v(vT0)}, 2, {v(vI)}')
    e(f'v_cmp_eq_u32 {sp(sMD)}, {v(vG4)}, {v(vT0)}')
    e(f's_mov_b32 s{sTMP}, 4682')
    for n in range(7):
        e(f'v_add_u32 {v(vT0)}, {64*n}, {v(vLANE)}')
        e(f'v_mul_u32_u24 {v(vT1)}, s{sTMP}, {v(vT0)}')
        e(f'v_lshrrev_b32 {v(vT1)}, 16, {v(vT1)}')
        e(f'v_mul_u32_u24 {v(vT2)}, {3584 - 14*16}, {v(vT1)}')
        e(f'v_lshl_add_u32 {v(vGUD+n)}, {v(vT0)}, 4, {v(vT2)}')
    assert all((p * 4682) >> 16 == p // 14 for p in range(448))
    e(f's_lshr_b32 s{sTMP}, s{sW}, 1')
    e(f's_mul_i32 s{sGUB}, s{sTMP}, {32*3584}')
    e(f's_mul_i32 s{sTMP2}, s{sJ}, 224')
    e(f's_add_u32 s{sGUB}, s{sGUB}, s{sTMP2}')
    e(f's_mul_i32 s{sGUM}, s{sTMP}, {KS3}')
    e(f's_and_b32 s{sTMP}, s{sW}, 1')
    e(f's_mul_i32 s{sTMP}, s{sTMP}, {UPOFF}')
    e(f's_add_u32 s{sGUM}, s{sGUM}, s{sTMP}')

def dma(srd_b, voff, sbase, simm, mbase, mimm, token):
    def f():
        e(f's_add_u32 s{sTMP3}, s{sbase}, {simm}')
        e(f's_add_u32 m0, s{mbase}, {mimm}')
        e(f'buffer_load_dwordx4 {v(voff)}, {srd(srd_b)}, s{sTMP3} offen lds', token=token)
    return f
def p1_chunk_loads(k):
    L = []
    for s in range(4*k, 4*k+4):
        for p in range(2):
            L.append(f'buffer_load_dwordx4 {a((p*16+s)*4,4)}, {v(vXO)}, {srd(SRD_X)}, 0 offen offset:{p*1024+s*64}')
        L.append([f's_mov_b64 exec, {sp(sNI0)}',
                  f'buffer_load_dwordx4 {a(128+s*4,4)}, {v(vHO)}, {srd(SRD_X)}, 0 offen offset:{s*64}',
                  's_mov_b64 exec, -1'])
    D = []
    for d in range(2):
        for sg in range(3):
            D.append(dma(SRD_WQ, vWQD, sWB, (8*k+d)*49152 + sg*1024, sMB, sg*32768 + (8*k+d)*1024, f'wq{k}'))
    out = []
    for x in range(6):
        out.append(D[x]); out += L[2*x:2*x+2]
    return out
def wo_dma(s): return dma(SRD_WO, vDW, sWDB, s*32768, sWDM, L_WO + s*4096, 'wo')
def wd_dma(s, tok): return dma(SRD_WD, vDW, sWDB, s*32768, sWDM, p4addr(s), tok)
def gu_dma(c):
    return [dma(SRD_GU, vGUD+n, sGUB, c*64*3584, sGUM, (c % 5)*SLOT + n*1024, f'gu{c}') for n in range(7)]

def allred(vx, vt, op):
    return [f'v_mov_b32 {v(vt)}, {v(vx)}', f'v_permlane16_swap_b32 {v(vx)}, {v(vt)}', f'{op} {v(vx)}, {v(vx)}, {v(vt)}',
            f'v_mov_b32 {v(vt)}, {v(vx)}', f'v_permlane32_swap_b32 {v(vx)}, {v(vt)}', f'{op} {v(vx)}, {v(vx)}, {v(vt)}']
def zipl(*lists):
    out = []
    for k in range(max(len(l) for l in lists)):
        for l in lists:
            if k < len(l): out.append(l[k])
    return out

def publish_and_poll(ph, name, extra_col=False):
    A.wait_all()
    A.raw('s_barrier')
    e(f's_cmp_lg_u32 s{sW}, 0')
    e(f's_cbranch_scc1 L_{name}_join')
    A.begin_cond()
    if ph == 0:
        e(f's_mov_b32 s{sSPIN}, 0x10000')
        e(f'v_mov_b32 {v(vT0)}, 0')
        A.label(f'L_{name}_n')
        e(f'buffer_load_dword {v(vT1)}, {v(vT0)}, {srd(SRD_DBG)}, 0 offen sc1')
        A.wait_vm0()
        e(f'v_readfirstlane_b32 s{sNONCE}, {v(vT1)}')
        e('s_nop 3')
        e(f's_cmp_lg_u32 s{sNONCE}, 0')
        e(f's_cbranch_scc1 L_{name}_nok')
        e('s_sleep 1')
        e(f's_sub_u32 s{sSPIN}, s{sSPIN}, 1')
        e(f's_cbranch_scc0 L_{name}_n')
        A.label(f'L_{name}_nok')
    e(f's_lshl_b32 s{sTMP}, s{sG}, 7')
    e(f's_add_u32 s{sTMP}, s{sTMP}, {WS_FLAGS + ph*2048}')
    e(f's_lshl_b32 s{sTMP2}, s{sJ}, 2')
    e(f's_add_u32 s{sTMP2}, s{sTMP2}, s{sTMP}')
    e(f'v_mov_b32 {v(vT0)}, s{sTMP2}')
    e(f'v_mov_b32 {v(vT1)}, s{sNONCE}')
    e('s_mov_b64 exec, 1')
    e(f'buffer_store_dword {v(vT1)}, {v(vT0)}, {srd(SRD_WS)}, 0 offen sc1')
    e('s_mov_b64 exec, -1')
    e(f'v_lshl_add_u32 {v(vFLG)}, {v(vI)}, 2, s{sTMP}')
    if extra_col:
        e(f's_lshl_b32 s{sTMP2}, s{sJ}, 2')
        e(f'v_lshl_add_u32 {v(vT2)}, {v(vI)}, 7, s{sTMP2}')
        e(f'v_and_b32 {v(vT3)}, 1, {v(vG4)}')
        e(f'v_cmp_eq_u32 vcc, 1, {v(vT3)}')
        e(f'v_cndmask_b32 {v(vFLG)}, {v(vFLG)}, {v(vT2)}, vcc')
    e(f's_mov_b32 s{sSPIN}, 0x10000')
    A.label(f'L_{name}_p')
    e(f'buffer_load_dword {v(vT1)}, {v(vFLG)}, {srd(SRD_WS)}, 0 offen sc1')
    A.wait_vm0()
    e(f'v_cmp_ne_u32 vcc, s{sNONCE}, {v(vT1)}')
    e('s_nop 1')
    e(f's_cbranch_vccz L_{name}_join')
    e(f's_sub_u32 s{sSPIN}, s{sSPIN}, 1')
    e(f's_cbranch_scc0 L_{name}_p')
    A.end_cond()
    A.label(f'L_{name}_join')
    A.raw('s_barrier')

def nonce_job():
    e(f's_or_b32 s{sTMP}, s2, s{sW}')
    e(f's_cmp_lg_u32 s{sTMP}, 0')
    e('s_cbranch_scc1 L_nonce_done')
    A.begin_cond()
    e(f'v_lshrrev_b32 {v(vT0)}, 2, {v(vLANE)}')
    e(f'v_lshlrev_b32 {v(vT0)}, 7, {v(vT0)}')
    e(f'v_and_b32 {v(vT1)}, 3, {v(vLANE)}')
    e(f'v_lshl_add_u32 {v(vT0)}, {v(vT1)}, 4, {v(vT0)}')
    B = 184
    for ph in range(3):
        e(f'buffer_load_dwordx4 {v(B+4*ph,4)}, {v(vT0)}, {srd(SRD_WS)}, 0 offen offset:{ph*2048} sc1')
    A.wait_vm0()
    e(f's_mov_b32 s{sNONCE}, 0')
    A.label('L_nonce_loop')
    e(f's_add_u32 s{sNONCE}, s{sNONCE}, 1')
    e(f's_mov_b64 {sp(sO4)}, 0')
    for k in range(12):
        e(f'v_cmp_eq_u32 vcc, s{sNONCE}, {v(B+k)}')
        e('s_nop 1')
        e(f's_or_b64 {sp(sO4)}, {sp(sO4)}, vcc')
    e(f's_cmp_lg_u64 {sp(sO4)}, 0')
    e('s_cbranch_scc1 L_nonce_loop')
    e(f'v_mov_b32 {v(vT0)}, 0')
    e(f'v_mov_b32 {v(vT1)}, s{sNONCE}')
    e('s_mov_b64 exec, 1')
    e(f'buffer_store_dword {v(vT1)}, {v(vT0)}, {srd(SRD_DBG)}, 0 offen sc1')
    e('s_mov_b64 exec, -1')
    A.end_cond()
    A.label('L_nonce_done')

def phase1():
    vWF = 44
    vACC = 100
    vHAL = 148; vQC = 152; vGR = 160; vRS = 172
    acc = lambda p, c: vACC + (p*6 + c)*4
    stamp()
    up = OPT['up_chunks']
    for k in range(up): run(p1_chunk_loads(k))
    prologue2()
    nonce_job()
    e(f'v_and_b32 {v(vT0)}, 31, {v(vLANE)}')
    e(f's_lshr_b32 s{sTMP}, s{sW}, 1'); e(f's_lshl_b32 s{sTMP}, s{sTMP}, 5')
    e(f'v_add_u32 {v(vT0)}, s{sTMP}, {v(vT0)}')
    e(f'v_lshrrev_b32 {v(vT1)}, 5, {v(vLANE)}')
    e(f'v_mul_u32_u24 {v(vT1)}, {16*3584}, {v(vT1)}')
    e(f'v_lshl_add_u32 {v(vT1)}, {v(vT0)}, 2, {v(vT1)}')
    e(f's_lshl_b32 s{sTMP}, s{sG}, 4'); e(f's_add_u32 s{sTMP}, s{sTMP}, s{sJ}')
    e(f's_mul_i32 s{sTMP}, s{sTMP}, 896')
    e(f's_and_b32 s{sTMP2}, s{sW}, 1'); e(f's_mul_i32 s{sTMP2}, s{sTMP2}, 448')
    e(f's_add_u32 s{sTMP}, s{sTMP}, s{sTMP2}'); e(f's_add_u32 s{sTMP}, s{sTMP}, {WS_CS}')
    e(f'v_lshl_add_u32 {v(vCSJ)}, {v(vT0)}, 3, s{sTMP}')
    e(f'v_cmp_gt_u32 vcc, 56, {v(vT0)}')
    e(f'v_cmp_gt_u32 {sp(sO4)}, 32, {v(vLANE)}')
    e(f's_and_b64 vcc, vcc, {sp(sO4)}')
    e(f'v_mov_b32 {v(vT2)}, 0x7fffff00')
    e(f'v_cndmask_b32 {v(vCSJ)}, {v(vT2)}, {v(vCSJ)}, vcc')
    e(f's_mul_i32 s{sTMP}, s{sG}, {32*3584}')
    e(f's_mul_i32 s{sTMP2}, s{sJ}, 224')
    e(f's_add_u32 s{sC0}, s{sTMP}, s{sTMP2}')
    e(f'v_mov_b32 {v(vT4)}, {v(vT1)}')
    side = []
    for r in range(16):
        def f(r=r):
            e(f's_add_u32 s{sTMP3}, s{sC0}, {r*3584}')
            e(f'buffer_load_dword {v(vCJ+r)}, {v(vT4)}, {srd(SRD_GU)}, s{sTMP3} offen')
        side.append(f)
    for t in range(4):
        side.append(f'buffer_load_dwordx2 {v(vXR+2*t,2)}, {v(vOUT)}, {srd(SRD_X)}, 0 offen offset:{t*32}')
    for k in range(8): e(f'v_mov_b32 {v(vQC+k)}, 0')
    pend = []
    for k in range(up, 4): pend += p1_chunk_loads(k)
    pend += side
    pend += [wo_dma(s) for s in range(15)]
    def reads(s):
        b = vWF + (s & 1)*28
        R = []
        for c in range(6):
            sg, t = c >> 1, c & 1
            ad = [[vTR0, vTR1], [vTR0, vTR1], [vTR0B, vTR1B]][sg][t]
            off = (sg & 1)*32768*(sg < 2) + s*2048
            R.append(f'ds_read_b64_tr_b16 {v(b+c*4,2)}, {v(ad)} offset:{off}')
            R.append(f'ds_read_b64_tr_b16 {v(b+c*4+2,2)}, {v(ad)} offset:{off+256}')
        R.append(f'ds_read_b64_tr_b16 {v(b+24,2)}, {v(vTRE)} offset:{s*2048}')
        R.append(f'ds_read_b64_tr_b16 {v(b+26,2)}, {v(vTRE)} offset:{s*2048+256}')
        return R
    M = 'v_mfma_f32_16x16x32_bf16'
    A.wait_token('wq0'); A.raw('s_barrier')
    stamp()
    run(reads(0))
    npend = (len(pend) + 13) // 14
    for s in range(16):
        b = vWF + (s & 1)*28
        xf = [a((0*16+s)*4, 4), a((16+s)*4, 4), a(128+s*4, 4)]
        C = (lambda r: '0' if s == 0 else v(r, 4))
        mf = []
        for p in range(3): mf.append(f'{M} {v(vGR+4*p,4)}, {xf[p]}, {xf[p]}, {C(vGR+4*p)}')
        for p in range(3): mf.append(f'{M} {v(vRS+4*p,4)}, {v(vONE,4)}, {xf[p]}, {C(vRS+4*p)}')
        for c in range(6):
            for p in range(2): mf.append(f'{M} {v(acc(p,c),4)}, {v(b+c*4,4)}, {xf[p]}, {C(acc(p,c))}')
        mf.append(f'{M} {v(vHAL,4)}, {v(b+24,4)}, {xf[2]}, {C(vHAL)}')
        def qc(s=s, b=b):
            e(f's_cmp_eq_u32 s{sW}, {s & 3}')
            e(f's_cbranch_scc0 L_qc{s}')
            A.begin_cond()
            e(f'{M} {v(vQC,4)}, {v(b,4)}, {v(vONE,4)}, {v(vQC,4)}')
            e(f'{M} {v(vQC+4,4)}, {v(b+4,4)}, {v(vONE,4)}, {v(vQC+4,4)}')
            A.end_cond()
            A.label(f'L_qc{s}')
        mf.append(qc)
        fill = []
        if s < 15:
            if (s + 1) % 4 == 0:
                fill.append(lambda s=s: (A.wait_token(f'wq{(s+1)//4}'), A.raw('s_barrier')))
            fill += reads(s + 1)
        extra = pend[:npend]; pend = pend[npend:]
        weave(mf, fill + extra, start=0)
    assert not pend
    stamp()
    e(f's_lshl_b32 s{sTMP}, s{sW}, 6'); e(f's_add_u32 s{sTMP}, s{sTMP}, {L_CS1}')
    e(f'v_lshl_add_u32 {v(vCSW)}, {v(vG4)}, 4, s{sTMP}')
    e(f's_lshl_b32 s{sTMP}, s{sW}, 7'); e(f's_add_u32 s{sTMP}, s{sTMP}, {L_CS1+256}')
    e(f'v_lshl_add_u32 {v(vT0)}, {v(vG4)}, 4, s{sTMP}')
    e(f'v_mov_b32 {v(vT1)}, {L_CS1}')
    e(f'v_lshl_add_u32 {v(vCSR)}, {v(vG4)}, 4, {v(vT1)}')
    e(f's_mov_b64 exec, {sp(sI0)}')
    e(f'ds_write_b128 {v(vCSW)}, {v(vHAL,4)}')
    e(f'ds_write_b128 {v(vT0)}, {v(vQC,4)}')
    e(f'ds_write_b128 {v(vT0)}, {v(vQC+4,4)} offset:64')
    e('s_mov_b64 exec, -1')
    vS = 184
    e(f's_mov_b32 s{sC0}, {f32(1.0/512)}'); e(f's_mov_b32 s{sC1}, {f32(1e-5)}')
    st = []
    for p in range(3):
        t = 192 + 2*p; g = vGR + 4*p
        l = [f'v_cndmask_b32 {v(t)}, {v(g)}, {v(g+1)}, {sp(sM1)}', f'v_cndmask_b32 {v(t)}, {v(t)}, {v(g+2)}, {sp(sM2)}',
             f'v_cndmask_b32 {v(t)}, {v(t)}, {v(g+3)}, {sp(sM3)}', f'v_cndmask_b32 {v(t)}, 0, {v(t)}, {sp(sMD)}']
        l += allred(t, t+1, 'v_add_f32')
        l += [f'v_mul_f32 {v(vS+p)}, s{sC0}, {v(vRS+4*p)}',
              f'v_mul_f32 {v(t)}, s{sC0}, {v(t)}',
              f'v_fma_f32 {v(t)}, -{v(vS+p)}, {v(vS+p)}, {v(t)}',
              f'v_max_f32 {v(t)}, 0, {v(t)}',
              f'v_add_f32 {v(t)}, s{sC1}, {v(t)}',
              f'v_rsq_f32 {v(vS+4+p)}, {v(t)}']
        st.append(l)
    run(zipl(*st))
    A.barrier()
    stamp()
    vCS = 44
    for c in range(4): e(f'ds_read_b128 {v(vCS+8+4*c,4)}, {v(vCSR)} offset:{c*64}')
    for w in range(4):
        for tq in range(2):
            d = vCS + 4*tq if w == 0 else 68 + ((w-1)*2+tq)*4
            e(f'ds_read_b128 {v(d,4)}, {v(vCSR)} offset:{256 + (w*2+tq)*64}')
    pre = gu_dma(0) + gu_dma(1)
    e(f's_mul_i32 s{sTMP}, s{sW}, {2*KVT}'); e(f's_add_u32 s{sTMP}, s{sTMP}, {L_KV + KVT}')
    e(f'v_mul_u32_u24 {v(vT0)}, {KVP}, {v(vI)}')
    e(f'v_lshl_add_u32 {v(vT0)}, {v(vG4)}, 3, {v(vT0)}')
    e(f'v_add_u32 {v(vKVW)}, s{sTMP}, {v(vT0)}')
    e(f's_lshl_b32 s{sTMP}, s{sW}, 5'); e(f's_add_u32 s{sTMP}, s{sTMP}, {L_KV}')
    e(f'v_add_u32 {v(vT3)}, s{sTMP}, {v(vT0)}')
    work = []
    for w in range(1, 4):
        for k in range(8): work.append(f'v_add_f32 {v(vCS+k)}, {v(vCS+k)}, {v(68+(w-1)*8+k)}')
    vPK = 200
    def corr(ac, cs, p, dst):
        L = []
        for r in range(4): L.append(f'v_fma_f32 {v(ac+r)}, -{v(vS+p)}, {v(cs+r)}, {v(ac+r)}')
        for r in range(4): L.append(f'v_mul_f32 {v(ac+r)}, {v(vS+4+p)}, {v(ac+r)}')
        L.append(f'v_cvt_pk_bf16_f32 {v(dst)}, {v(ac)}, {v(ac+1)}')
        L.append(f'v_cvt_pk_bf16_f32 {v(dst+1)}, {v(ac+2)}, {v(ac+3)}')
        return L
    for c in (2, 3, 4, 5):
        for p in range(2):
            work += corr(acc(p, c), vCS + 4*c, p, vPK + (p*6+c)*2)
            work.append(f'ds_write_b64 {v(vKVW)}, {v(vPK+(p*6+c)*2,2)} offset:{p*KVT + (c-2)*32}')
    e(f'ds_read_b128 {v(96,4)}, {v(vCSW)}')
    work += corr(vHAL, 96, 2, 198)
    work.append(f'ds_write_b64 {v(vT3)}, {v(198,2)}')
    work2 = []
    for c in (0, 1):
        for p in range(2): work2 += corr(acc(p, c), vCS + 4*c, p, vPK + (p*6+c)*2)
    qadds = work[:24]; work = work[24:]
    weave(work + qadds + work2, pre, start=2, every=8)
    vBP, vBC = 100, 104
    e(f's_or_b32 s{sTMP}, s{sG}, s{sW}')
    e(f's_cmp_eq_u32 s{sTMP}, 0')
    e(f's_cselect_b32 s{sTMP2}, -100, -9')
    e(f'v_mov_b32 {v(vT1)}, {f32(-1e30)}')
    e(f'v_lshlrev_b32 {v(vT0)}, 2, {v(vG4)}')
    e(f'v_sub_u32 {v(vT0)}, {v(vI)}, {v(vT0)}')
    for r in range(4):
        e(f'v_subrev_u32 {v(vT2)}, {r}, {v(vT0)}')
        e(f'v_cmp_gt_u32 vcc, 8, {v(vT2)}')
        e(f'v_cmp_ge_i32 {sp(sO4)}, s{sTMP2}, {v(vT2)}')
        e(f'v_cndmask_b32 {v(vBC+r)}, {v(vT1)}, 0, vcc')
        e(f'v_cndmask_b32 {v(vBP+r)}, {v(vT1)}, 0, {sp(sO4)}')
    e(f's_cmp_eq_u32 s{sW}, 0')
    e(f's_cselect_b32 s{sC0}, 7, 15')
    e(f's_mov_b32 s{sTMP2}, {8*KVP}')
    e(f's_cselect_b32 s{sC1}, s{sTMP2}, {KVT}')
    e(f's_mul_i32 s{sTMP}, s{sW}, {2*KVT}'); e(f's_sub_u32 s{sTMP}, s{sTMP}, {KVT}')
    e(f's_cmp_eq_u32 s{sW}, 0')
    e(f's_cselect_b32 s{sTMP}, 0, s{sTMP}')
    e(f's_add_u32 s{sTMP}, s{sTMP}, {L_KV}')
    vKP, vVP, vVC = 108, 110, 112
    e(f'v_and_b32 {v(vT0)}, s{sC0}, {v(vI)}')
    e(f'v_mul_u32_u24 {v(vT0)}, {KVP}, {v(vT0)}')
    e(f'v_lshl_add_u32 {v(vT0)}, {v(vG4)}, 3, {v(vT0)}')
    e(f'v_add_u32 {v(vKP)}, s{sTMP}, {v(vT0)}')
    e(f'v_add_u32 {v(vKP+1)}, s{sC1}, {v(vKP)}')
    e(f'v_lshrrev_b32 {v(vT0)}, 2, {v(vI)}')
    e(f'v_lshl_add_u32 {v(vT0)}, {v(vG4)}, 2, {v(vT0)}')
    e(f'v_and_b32 {v(vT1)}, 3, {v(vI)}')
    e(f'v_lshlrev_b32 {v(vT1)}, 3, {v(vT1)}')
    e(f'v_and_b32 {v(vT2)}, s{sC0}, {v(vT0)}')
    e(f'v_mul_u32_u24 {v(vT2)}, {KVP}, {v(vT2)}')
    e(f'v_add3_u32 {v(vVP)}, {v(vT2)}, {v(vT1)}, s{sTMP}')
    e(f'v_add_u32 {v(vVP+1)}, s{sC1}, {v(vVP)}')
    e(f'v_mul_u32_u24 {v(vT0)}, {KVP}, {v(vT0)}')
    e(f's_mul_i32 s{sTMP}, s{sW}, {2*KVT}'); e(f's_add_u32 s{sTMP}, s{sTMP}, {L_KV + KVT}')
    e(f'v_add3_u32 {v(vVC)}, {v(vT0)}, {v(vT1)}, s{sTMP}')
    A.barrier()
    stamp()
    vKPd = 44
    vV = 52
    vSS = 116
    vP = 68
    vMX = 84
    vO = 148
    vOP = 164
    for n in range(4):
        p, hh = n >> 1, n & 1
        e(f'ds_read_b64 {v(vKPd+2*n,2)}, {v(vKP+p)} offset:{hh*32}')
    for n in range(4):
        p, hh = n >> 1, n & 1
        e(f'ds_read_b64_tr_b16 {v(vV+4*n,2)}, {v(vVP+p)} offset:{64+hh*32}')
        e(f'ds_read_b64_tr_b16 {v(vV+4*n+2,2)}, {v(vVC)} offset:{p*KVT+64+hh*32}')
    run(wo_dma(15))
    M16 = 'v_mfma_f32_16x16x16_bf16'
    for n in range(4):
        p, hh = n >> 1, n & 1
        q = v(vPK + (p*6+hh)*2, 2); kc = v(vPK + (p*6+2+hh)*2, 2)
        e(f'{M16} {v(vSS+8*n+4,4)}, {kc}, {q}, 0')
    for n in range(4):
        p, hh = n >> 1, n & 1
        q = v(vPK + (p*6+hh)*2, 2)
        e(f'{M16} {v(vSS+8*n,4)}, {v(vKPd+2*n,2)}, {q}, 0')
    e(f's_mov_b32 s{sC0}, {f32(0.25*LOG2E)}')
    sm = []
    for n in range(4):
        S = vSS + 8*n; m = vMX + 2*n
        l = []
        for r in range(4): l.append(f'v_fma_f32 {v(S+4+r)}, {v(S+4+r)}, s{sC0}, {v(vBC+r)}')
        for r in range(4): l.append(f'v_fma_f32 {v(S+r)}, {v(S+r)}, s{sC0}, {v(vBP+r)}')
        l += [f'v_max3_f32 {v(m)}, {v(S)}, {v(S+1)}, {v(S+2)}', f'v_max3_f32 {v(m)}, {v(m)}, {v(S+3)}, {v(S+4)}',
              f'v_max3_f32 {v(m)}, {v(m)}, {v(S+5)}, {v(S+6)}', f'v_max_f32 {v(m)}, {v(m)}, {v(S+7)}']
        l += allred(m, m+1, 'v_max_f32')
        for r in range(8): l.append(f'v_sub_f32 {v(S+r)}, {v(S+r)}, {v(m)}')
        for r in range(8): l.append(f'v_exp_f32 {v(S+r)}, {v(S+r)}')
        for r in range(4): l.append(f'v_cvt_pk_bf16_f32 {v(vP+4*n+r)}, {v(S+2*r)}, {v(S+2*r+1)}')
        l += [f'v_add_f32 {v(m)}, {v(S)}, {v(S+1)}']
        for r in range(2, 8): l.append(f'v_add_f32 {v(m)}, {v(m)}, {v(S+r)}')
        l.append(f'{M} {v(vO+4*n,4)}, {v(vV+4*n,4)}, {v(vP+4*n,4)}, 0')
        l += allred(m, m+1, 'v_add_f32')
        l.append(f'v_rcp_f32 {v(m)}, {v(m)}')
        sm.append(l)
    run(zipl(*sm))
    cj = [f'v_lshlrev_b32 {v(92)}, 16, {v(vCJ)}', f'v_and_b32 {v(93)}, s{sHI}, {v(vCJ)}']
    for r in range(1, 16):
        cj += [f'v_lshlrev_b32 {v(94)}, 16, {v(vCJ+r)}', f'v_and_b32 {v(95)}, s{sHI}, {v(vCJ+r)}',
               f'v_add_f32 {v(92)}, {v(92)}, {v(94)}', f'v_add_f32 {v(93)}, {v(93)}, {v(95)}']
    cj += [f'v_mov_b32 {v(94)}, {v(92)}', f'v_mov_b32 {v(95)}, {v(93)}',
           f'v_permlane32_swap_b32 {v(92)}, {v(94)}', f'v_permlane32_swap_b32 {v(93)}, {v(95)}',
           f'v_add_f32 {v(92)}, {v(92)}, {v(94)}', f'v_add_f32 {v(93)}, {v(93)}, {v(95)}',
           f'buffer_store_dwordx2 {v(92,2)}, {v(vCSJ)}, {srd(SRD_WS)}, 0 offen sc1']
    fin = []
    for n in range(4):
        p, hh = n >> 1, n & 1
        for r in range(4): fin.append(f'v_mul_f32 {v(vO+4*n+r)}, {v(vO+4*n+r)}, {v(vMX+2*n)}')
        fin.append(f'v_cvt_pk_bf16_f32 {v(vOP+4*p+2*hh)}, {v(vO+4*n)}, {v(vO+4*n+1)}')
        fin.append(f'v_cvt_pk_bf16_f32 {v(vOP+4*p+2*hh+1)}, {v(vO+4*n+2)}, {v(vO+4*n+3)}')
    e(f's_lshl_b32 s{sTMP}, s{sG}, 3'); e(f's_lshl_b32 s{sTMP2}, s{sW}, 1'); e(f's_add_u32 s{sTMP}, s{sTMP}, s{sTMP2}')
    e(f's_lshl_b32 s{sTMP}, s{sTMP}, 4'); e(f's_add_u32 s{sTMP}, s{sTMP}, s{sJ}'); e(f's_lshl_b32 s{sTMP}, s{sTMP}, 10')
    e(f's_add_u32 s{sO4}, s{sTMP}, {WS_O}'); e(f's_add_u32 s{sO4+1}, s{sTMP}, {WS_O + 16384}')
    run(cj[:8])
    run(fin[:12]); e(f'buffer_store_dwordx4 {v(vOP,4)}, {v(vL16)}, {srd(SRD_WS)}, s{sO4} offen sc1')
    run(fin[12:]); e(f'buffer_store_dwordx4 {v(vOP+4,4)}, {v(vL16)}, {srd(SRD_WS)}, s{sO4+1} offen sc1')
    run(cj[8:])
    stamp()

def tr_addr_128(dst, base):
    e(f'v_lshrrev_b32 {v(vT1)}, 1, {v(vT0)}')
    e(f'v_and_b32 {v(vT1)}, 3, {v(vT1)}')
    e(f'v_lshlrev_b32 {v(vT1)}, 5, {v(vT1)}')
    e(f'v_lshl_add_u32 {v(vT1)}, {v(vT0)}, 7, {v(vT1)}')
    e(f'v_and_b32 {v(vT2)}, 3, {v(vI)}')
    e(f'v_lshl_add_u32 {v(vT1)}, {v(vT2)}, 3, {v(vT1)}')
    for t in range(4):
        e(f'v_xor_b32 {v(dst+t)}, {t*32}, {v(vT1)}')
        if base: e(f'v_add_u32 {v(dst+t)}, {base}, {v(dst+t)}')

def phase2():
    M = 'v_mfma_f32_16x16x32_bf16'
    vAD = 44; vWF = 48; vACC = 80
    e(f'v_lshrrev_b32 {v(vT0)}, 2, {v(vI)}')
    e(f'v_lshl_add_u32 {v(vT0)}, {v(vG4)}, 2, {v(vT0)}')
    tr_addr_128(vAD, L_WO)
    e(f's_lshl_b32 s{sTMP}, s{sT2}, 14')
    for k in range(4): e(f's_add_u32 s{sO4+k}, s{sTMP}, {WS_O + k*4096}')
    publish_and_poll(0, 'f1')
    stamp()
    for s in range(16):
        e(f'buffer_load_dwordx4 {a(4*s,4)}, {v(vL16)}, {srd(SRD_WS)}, s{sO4+(s>>2)} offen offset:{(s&3)*1024} sc1')
    run(gu_dma(2))
    def reads(s):
        b = vWF + (s & 1)*16
        R = []
        for t in range(4):
            R.append(f'ds_read_b64_tr_b16 {v(b+4*t,2)}, {v(vAD+t)} offset:{s*4096}')
            R.append(f'ds_read_b64_tr_b16 {v(b+4*t+2,2)}, {v(vAD+t)} offset:{s*4096+2048}')
        return R
    run(reads(0))
    for s in range(16):
        b = vWF + (s & 1)*16
        mf = [f'{M} {v(vACC+4*t,4)}, {v(b+4*t,4)}, {a(4*s,4)}, {"0" if s == 0 else v(vACC+4*t,4)}' for t in range(4)]
        weave(mf, reads(s+1) if s < 15 else [], per=2)
    stamp()
    vHP = 96
    for t in range(4):
        for k in range(2):
            x = vXR + 2*t + k
            e(f'v_lshlrev_b32 {v(vT0)}, 16, {v(x)}'); e(f'v_and_b32 {v(vT1)}, s{sHI}, {v(x)}')
            e(f'v_add_f32 {v(vT0)}, {v(vT0)}, {v(vACC+4*t+2*k)}'); e(f'v_add_f32 {v(vT1)}, {v(vT1)}, {v(vACC+4*t+2*k+1)}')
            e(f'v_cvt_pk_bf16_f32 {v(vHP+2*t+k)}, {v(vT0)}, {v(vT1)}')
    e(f's_lshl_b32 s{sTMP}, s{sT2}, 14'); e(f's_lshl_b32 s{sTMP2}, s{sCB}, 11'); e(f's_add_u32 s{sTMP}, s{sTMP}, s{sTMP2}')
    e(f's_add_u32 s{sTMP}, s{sTMP}, {WS_H}')
    e(f'buffer_store_dwordx4 {v(vHP,4)}, {v(vL16)}, {srd(SRD_WS)}, s{sTMP} offen sc1')
    e(f'buffer_store_dwordx4 {v(vHP+4,4)}, {v(vL16)}, {srd(SRD_WS)}, s{sTMP} offen offset:1024 sc1')
    for k in range(8):
        e(f'v_lshlrev_b32 {v(vH+2*k)}, 16, {v(vHP+k)}'); e(f'v_and_b32 {v(vH+2*k+1)}, s{sHI}, {v(vHP+k)}')
    s1, s2 = 104, 105
    e(f'v_add_f32 {v(s1)}, {v(vH)}, {v(vH+1)}'); e(f'v_mul_f32 {v(s2)}, {v(vH)}, {v(vH)}')
    e(f'v_fmac_f32 {v(s2)}, {v(vH+1)}, {v(vH+1)}')
    for k in range(2, 16):
        e(f'v_add_f32 {v(s1)}, {v(s1)}, {v(vH+k)}'); e(f'v_fmac_f32 {v(s2)}, {v(vH+k)}, {v(vH+k)}')
    run(zipl(allred(s1, 106, 'v_add_f32'), allred(s2, 107, 'v_add_f32')))
    e(f's_lshl_b32 s{sTMP}, s{sT2}, 10'); e(f's_lshl_b32 s{sTMP2}, s{sCB}, 3'); e(f's_add_u32 s{sTMP}, s{sTMP}, s{sTMP2}')
    e(f's_add_u32 s{sTMP}, s{sTMP}, {WS_STATS}')
    e(f'v_lshlrev_b32 {v(vT0)}, 6, {v(vI)}')
    e('s_mov_b64 exec, 0xffff')
    e(f'buffer_store_dwordx2 {v(s1,2)}, {v(vT0)}, {srd(SRD_WS)}, s{sTMP} offen sc1')
    e('s_mov_b64 exec, -1')

def phase3():
    M = 'v_mfma_f32_32x32x16_bf16'
    vAD = 44
    vHOF = 49; vSTO = 50; vCSO = 51; vAST = 52
    vWF = 56
    NB = 8
    vACC = 96
    vCL = 208
    e(f'v_and_b32 {v(vT0)}, 1, {v(vG4)}')
    e(f'v_mul_u32_u24 {v(vT0)}, {UPOFF}, {v(vT0)}')
    e(f'v_lshrrev_b32 {v(vT1)}, 1, {v(vG4)}')
    e(f'v_lshrrev_b32 {v(vT2)}, 2, {v(vI)}')
    e(f'v_lshl_add_u32 {v(vT1)}, {v(vT1)}, 2, {v(vT2)}')
    e(f'v_mul_u32_u24 {v(vT1)}, 224, {v(vT1)}')
    e(f'v_and_b32 {v(vT2)}, 3, {v(vI)}')
    e(f'v_lshlrev_b32 {v(vT2)}, 3, {v(vT2)}')
    e(f'v_add3_u32 {v(vAD)}, {v(vT0)}, {v(vT1)}, {v(vT2)}')
    for n in range(1, 5): e(f'v_add_u32 {v(vAD+n)}, {n*SLOT}, {v(vAD)}')
    e(f'v_and_b32 {v(vT0)}, 1, {v(vG4)}')
    e(f'v_lshlrev_b32 {v(vT1)}, 14, {v(vT0)}')
    e(f'v_lshrrev_b32 {v(vT2)}, 1, {v(vG4)}')
    e(f'v_lshl_add_u32 {v(vT1)}, {v(vT2)}, 8, {v(vT1)}')
    e(f'v_lshl_add_u32 {v(vHOF)}, {v(vI)}, 4, {v(vT1)}')
    e(f'v_lshlrev_b32 {v(vT1)}, 10, {v(vT0)}')
    e(f'v_lshl_add_u32 {v(vT1)}, {v(vI)}, 6, {v(vT1)}')
    e(f'v_lshl_add_u32 {v(vSTO)}, {v(vT2)}, 5, {v(vT1)}')
    e(f'v_mul_u32_u24 {v(vT1)}, {56*1024}, {v(vT0)}')
    e(f'v_lshl_add_u32 {v(vT1)}, {v(vT2)}, 8, {v(vT1)}')
    e(f'v_lshl_add_u32 {v(vAST)}, {v(vI)}, 4, {v(vT1)}')
    e(f'v_lshlrev_b32 {v(vCSO)}, 2, {v(vTID)}')
    e(f's_lshl_b32 s{sTMP}, s{sG}, 3'); e(f's_lshl_b32 s{sTMP2}, s{sW}, 1'); e(f's_add_u32 s{sC1}, s{sTMP}, s{sTMP2}')
    e(f's_lshl_b32 s{sTMP}, s{sC1}, 14')
    for k in range(4): e(f's_add_u32 s{sO4+k}, s{sTMP}, {WS_H + k*4096}')
    publish_and_poll(1, 'f2', extra_col=True)
    stamp()
    e(f's_lshl_b32 s{sTMP}, s{sC1}, 10'); e(f's_add_u32 s{sTMP}, s{sTMP}, {WS_STATS}')
    e(f'buffer_load_dwordx4 {v(88,4)}, {v(vSTO)}, {srd(SRD_WS)}, s{sTMP} offen sc1')
    e(f'buffer_load_dwordx4 {v(92,4)}, {v(vSTO)}, {srd(SRD_WS)}, s{sTMP} offen offset:16 sc1')
    e(f's_mul_i32 s{sC0}, s{sJ}, 896')
    for g in range(16):
        e(f's_add_u32 s{sTMP3}, s{sC0}, {WS_CS + g*16*896}')
        e(f'buffer_load_dword {v(vCL+g)}, {v(vCSO)}, {srd(SRD_WS)}, s{sTMP3} offen sc1')
    def hload(m):
        u, ee = m >> 1, m & 1
        return f'buffer_load_dwordx4 {a(4*m,4)}, {v(vHOF)}, {srd(SRD_WS)}, s{sO4+(u>>2)} offen offset:{(u&3)*1024+ee*512} sc1'
    for m in range(32): e(hload(m))
    for g in range(1, 16): e(f'v_add_f32 {v(vCL)}, {v(vCL)}, {v(vCL+g)}')
    e(f'v_cmp_le_u32 vcc, 112, {v(vTID)}')
    e(f'v_mov_b32 {v(vT0)}, 0')
    e(f'v_mov_b32 {v(vT1)}, 112')
    e(f'v_cndmask_b32 {v(vT1)}, 0, {v(vT1)}, vcc')
    e(f'v_sub_u32 {v(vT1)}, {v(vTID)}, {v(vT1)}')
    e(f'v_cndmask_b32 {v(vT0)}, 0, 64, vcc')
    e(f'v_lshrrev_b32 {v(vT2)}, 4, {v(vT1)}')
    e(f'v_lshl_add_u32 {v(vT0)}, {v(vT2)}, 7, {v(vT0)}')
    e(f'v_and_b32 {v(vT1)}, 15, {v(vT1)}')
    e(f'v_lshl_add_u32 {v(vT0)}, {v(vT1)}, 2, {v(vT0)}')
    e(f'v_add_u32 {v(vT0)}, {L_CS3}, {v(vT0)}')
    e(f'ds_write_b32 {v(vT0)}, {v(vCL)}')
    e(f'v_add_f32 {v(88)}, {v(88)}, {v(90)}'); e(f'v_add_f32 {v(89)}, {v(89)}, {v(91)}')
    e(f'v_add_f32 {v(92)}, {v(92)}, {v(94)}'); e(f'v_add_f32 {v(93)}, {v(93)}, {v(95)}')
    e(f'v_add_f32 {v(88)}, {v(88)}, {v(92)}'); e(f'v_add_f32 {v(89)}, {v(89)}, {v(93)}')
    e(f'v_mov_b32 {v(90)}, {v(88)}'); e(f'v_mov_b32 {v(91)}, {v(89)}')
    e(f'v_permlane32_swap_b32 {v(88)}, {v(90)}'); e(f'v_permlane32_swap_b32 {v(89)}, {v(91)}')
    e(f'v_add_f32 {v(88)}, {v(88)}, {v(90)}'); e(f'v_add_f32 {v(89)}, {v(89)}, {v(91)}')
    e(f's_mov_b32 s{sC0}, {f32(1.0/512)}'); e(f's_mov_b32 s{sTMP}, {f32(1e-5)}')
    vMEAN, vA1, vIC = 53, 54, 55
    e(f'v_mul_f32 {v(vMEAN)}, s{sC0}, {v(88)}')
    e(f'v_mul_f32 {v(89)}, s{sC0}, {v(89)}')
    e(f'v_fma_f32 {v(89)}, -{v(vMEAN)}, {v(vMEAN)}, {v(89)}')
    e(f'v_max_f32 {v(89)}, 0, {v(89)}')
    e(f'v_add_f32 {v(89)}, s{sTMP}, {v(89)}')
    e(f'v_rsq_f32 {v(90)}, {v(89)}')
    e(f'v_sqrt_f32 {v(91)}, {v(89)}')
    e(f'v_mul_f32 {v(vA1)}, {f32(-LOG2E)}, {v(90)}')
    e(f'v_mul_f32 {v(vIC)}, {f32(-LOG2E)}, {v(91)}')
    e(f'v_lshrrev_b32 {v(vT0)}, 1, {v(vG4)}')
    e(f'v_lshlrev_b32 {v(vT0)}, 4, {v(vT0)}')
    e(f'v_add_u32 {v(vT0)}, {L_CS3}, {v(vT0)}')
    A.wait_token('gu0')
    A.barrier()
    for ft in range(7):
        for q in range(4):
            e(f'ds_read_b128 {v(vACC+16*ft+4*q,4)}, {v(vT0)} offset:{ft*128+q*32}')
    pend = gu_dma(3) + gu_dma(4) + [wd_dma(s, 'wdA') for s in (15, 16, 17)]
    init = [f'v_mul_f32 {v(vACC+k)}, -{v(vMEAN)}, {v(vACC+k)}' for k in range(112)]
    weave(init, pend, start=2, every=6)
    stamp()
    def rd(x):
        m, ft = divmod(x, 7); u, ee = m >> 1, m & 1
        c = u >> 1; b = vWF + (x % NB)*4
        off = (u & 1)*KS3 + ee*1792 + ft*32
        return [f'ds_read_b64_tr_b16 {v(b,2)}, {v(vAD + c % 5)} offset:{off}',
                f'ds_read_b64_tr_b16 {v(b+2,2)}, {v(vAD + c % 5)} offset:{off+3584}']
    D = 5
    for x in range(D): run(rd(x))
    later = []
    for x in range(224):
        m, ft = divmod(x, 7)
        b = vWF + (x % NB)*4
        e(f'{M} {v(vACC+16*ft,16)}, {v(b,4)}, {a(4*m,4)}, {v(vACC+16*ft,16)}')
        y = x + D
        if y < 224:
            if y % 28 == 0:
                c = y // 28
                A.wait_token(f'gu{c}'); A.raw('s_barrier')
                if 2 <= c <= 4: later += gu_dma(c + 3)
                if c == 5: later += [wd_dma(s, 'wdA') for s in range(0, 7)]
                if c == 6: later += [wd_dma(s, 'wdA') for s in range(7, 15)]
                if c == 7: later += [wd_dma(s, 'wdA') for s in range(18, 25)]
            run(rd(y))
        if later and x % 3 == 1: run(later.pop(0))
    assert not later
    stamp()
    A.raw('s_barrier')
    pend = [wd_dma(s, 'wdA') for s in range(25, 39)]
    e(f's_mul_i32 s{sTMP}, s{sC1}, {56*1024}'); e(f's_add_u32 s{sC0}, s{sTMP}, {WS_ACT}')
    e(f's_mul_i32 s{sTMP}, s{sJ}, {7*512}'); e(f's_add_u32 s{sC0}, s{sC0}, s{sTMP}')
    work = []
    for ft in range(7):
        G_ = vACC + 16*ft; U_ = G_ + 8; E_ = vWF + (ft & 1)*8
        l = []
        for r in range(8): l.append(f'v_mul_f32 {v(G_+r)}, {v(vA1)}, {v(G_+r)}')
        for r in range(8): l.append(f'v_exp_f32 {v(E_+r)}, {v(G_+r)}')
        for r in range(8): l.append(f'v_mul_f32 {v(G_+r)}, {v(G_+r)}, {v(U_+r)}')
        for r in range(8): l.append(f'v_fma_f32 {v(E_+r)}, {v(E_+r)}, {v(vIC)}, {v(vIC)}')
        for r in range(8): l.append(f'v_rcp_f32 {v(E_+r)}, {v(E_+r)}')
        for r in range(8): l.append(f'v_mul_f32 {v(G_+r)}, {v(G_+r)}, {v(E_+r)}')
        for r in range(4): l.append(f'v_cvt_pk_bf16_f32 {v(U_+r)}, {v(G_+2*r)}, {v(G_+2*r+1)}')
        l.append(f'buffer_store_dwordx4 {v(U_,4)}, {v(vAST)}, {srd(SRD_WS)}, s{sC0} offen offset:{ft*512} sc1')
        work += l
    weave(work, pend, start=1, every=12)
    stamp()

def phase4():
    M = 'v_mfma_f32_16x16x32_bf16'
    vAD = 44
    vWF = 56; NB = 8
    vACC = 96
    e(f'v_lshrrev_b32 {v(vT0)}, 1, {v(vG4)}')
    e(f'v_lshlrev_b32 {v(vT0)}, 4, {v(vT0)}')
    e(f'v_and_b32 {v(vT1)}, 1, {v(vG4)}')
    e(f'v_lshl_add_u32 {v(vT0)}, {v(vT1)}, 2, {v(vT0)}')
    e(f'v_lshrrev_b32 {v(vT1)}, 2, {v(vI)}')
    e(f'v_add_u32 {v(vT0)}, {v(vT0)}, {v(vT1)}')
    tr_addr_128(vAD, 0)
    for t in range(4):
        e(f'v_add_u32 {v(vAD+4+t)}, 0x10000, {v(vAD+t)}')
        e(f'v_add_u32 {v(vAD+8+t)}, 0x20000, {v(vAD+t)}')
    e(f's_mul_i32 s{sC0}, s{sT2}, {56*1024}'); e(f's_add_u32 s{sC0}, s{sC0}, {WS_ACT}')
    publish_and_poll(2, 'f3')
    stamp()
    def aload(s):
        def f():
            if s % 4 == 0: e(f's_add_u32 s{sC1}, s{sC0}, {s*1024}')
            e(f'buffer_load_dwordx4 {a(4*s,4)}, {v(vL16)}, {srd(SRD_WS)}, s{sC1} offen offset:{(s&3)*1024} sc1')
        return f
    UP = OPT.get('p4up', 16)
    for s in range(UP): run(aload(s))
    def rd(x):
        s, t = divmod(x, 4); b = vWF + (x % NB)*4
        ad = p4addr(s); hi = ad >> 16; off = ad & 0xffff
        assert off + 1024 + 3072 < 65536 + 4096
        r = []
        for k in range(2):
            o = off + k*1024; h2 = hi
            assert o < 65536
            r.append(f'ds_read_b64_tr_b16 {v(b+2*k,2)}, {v(vAD+4*h2+t)} offset:{o}')
        return r
    D = 5
    for x in range(D): run(rd(x))
    later = []
    for x in range(224):
        s, t = divmod(x, 4); b = vWF + (x % NB)*4
        e(f'{M} {v(vACC+4*t,4)}, {v(b,4)}, {a(4*s,4)}, {"0" if s == 0 else v(vACC+4*t,4)}')
        y = x + D
        if y < 224:
            if y == 39*4: A.wait_token('wdB'); A.raw('s_barrier')
            if y == 48*4: A.wait_token('wdC'); A.raw('s_barrier')
            run(rd(y))
        if t == 0 and s + UP < 56: run(aload(s + UP))
        if x == 9*4: A.raw('s_barrier'); later += [wd_dma(q, 'wdB') for q in range(39, 48)]
        if x == 18*4: A.raw('s_barrier'); later += [wd_dma(q, 'wdC') for q in range(48, 56)]
        if later and t == 2: run(later.pop(0))
    assert not later
    stamp()
    vHP = 112
    for t in range(4):
        for r in range(4): e(f'v_add_f32 {v(vACC+4*t+r)}, {v(vACC+4*t+r)}, {v(vH+4*t+r)}')
        e(f'v_cvt_pk_bf16_f32 {v(vHP+2*t)}, {v(vACC+4*t)}, {v(vACC+4*t+1)}')
        e(f'v_cvt_pk_bf16_f32 {v(vHP+2*t+1)}, {v(vACC+4*t+2)}, {v(vACC+4*t+3)}')
        e(f'buffer_store_dwordx2 {v(vHP+2*t,2)}, {v(vOUT)}, {srd(SRD_OUT)}, 0 offen offset:{t*32}')

def ts_dump():
    if not OPT['ts']: return
    A.wait_all()
    e(f's_memtime {sp(sO4)}')
    A.wait_lg0()
    e(f's_lshl_b32 s{sTMP}, s2, 8'); e(f's_lshl_b32 s{sTMP2}, s{sW}, 6'); e(f's_add_u32 s{sTMP}, s{sTMP}, s{sTMP2}')
    e(f's_add_u32 s{sTMP}, s{sTMP}, {WS_TS}')
    e(f'v_mov_b32 {v(vT0)}, 0')
    e('s_mov_b64 exec, 1')
    for k in range(nts[0] + 1):
        src = TSR[k] if k < nts[0] else sO4
        e(f'v_mov_b32 {v(vT1)}, s{src}')
        e(f'buffer_store_dword {v(vT1)}, {v(vT0)}, {srd(SRD_WS)}, s{sTMP} offen offset:{4*k}')
        e('s_nop 1')
    e('s_mov_b64 exec, -1')

prologue()
phase1()
if OPT['stop'] != 1:
    phase2()
    if OPT['stop'] != 2:
        phase3()
        if OPT['stop'] != 3:
            phase4()
ts_dump()
if OPT['stop']: A.wait_all()
A.label('L_end')
A.raw('s_endpgm')

hdr = open('sequential_preLN__sliding_local_dilated__swiglu_ffn__prompt.s.ref').read().split('; Override launch')[0]
txt = hdr + f'''; @launch grid=(256,1,1) block=(256,1,1) lds=163840
.amdgcn_target "amdgcn-amd-amdhsa--gfx950"
.text
.globl {KN}
.p2align 8
.type {KN},@function
{KN}:
''' + A.text() + f'''.section .rodata,"a"
.p2align 6
.amdhsa_kernel {KN}
  .amdhsa_next_free_vgpr 512
  .amdhsa_next_free_sgpr 102
  .amdhsa_accum_offset 256
  .amdhsa_group_segment_fixed_size 0
  .amdhsa_kernarg_size 80
  .amdhsa_user_sgpr_count 2
  .amdhsa_user_sgpr_kernarg_segment_ptr 1
  .amdhsa_system_sgpr_workgroup_id_x 1
.end_amdhsa_kernel
'''
open(sys.argv[1], 'w').write(txt)
print('instructions:', sum(1 for x in A.out if x.kind != 'label'), 'nops inserted:', A.nops_inserted)
```
